```python
import torch

def _softmax(x, axis=-1):
    return torch.softmax(x, dim=axis)
def _gelu(x):
    return torch.nn.functional.gelu(x, approximate="tanh")
def _silu(x):
    return torch.nn.functional.silu(x)
def _sigmoid(x):
    return torch.sigmoid(x)
def _layernorm(x, axis=-1, eps=1e-5):
    m = x.mean(dim=axis, keepdim=True)
    v = x.var(dim=axis, keepdim=True, unbiased=False)
    return (x - m) / torch.sqrt(v + eps)
def _scatter_add(tgt, idx, src, axis=0):
    return tgt.clone().index_add_(axis, idx, src)
def _segment_sum(src, seg, n):
    out = torch.zeros((n,) + src.shape[1:], dtype=src.dtype)
    return out.index_add_(0, seg, src)
def _pad(x, pw):
    flat = tuple(v for pair in reversed(pw) for v in pair)
    return torch.nn.functional.pad(x, flat)

kernel_name = 'parallel_sum__compressed_kv_cla__dense_activation_silu__prompt'

def setup_inputs():

    _w = (lambda a: (lambda t: t.to(torch.bfloat16) if t.is_floating_point() else t)(torch.as_tensor(a)))
    def _A_setup():
        B, H, Sq, Sk, D, M = 1, 16, 2048, 2048, 256, 448
        Dc = 4 * D
        return {
            "x": _w((lambda *s: torch.randn(*s, dtype=torch.bfloat16) * 0.05)(B, Sq, M)),
            "c_kv": _w((lambda *s: torch.randn(*s, dtype=torch.bfloat16) * 0.4)(B, Sk, Dc)),
            "w_q": _w((lambda *s: torch.randn(*s, dtype=torch.bfloat16) * 3.2)(M, H, D) * (M ** -0.5)),
            "w_uk": _w((lambda *s: torch.randn(*s, dtype=torch.bfloat16) * 3.2)(Dc, H, D) * (Dc ** -0.5)),
            "w_uv": _w((lambda *s: torch.randn(*s, dtype=torch.bfloat16) * 0.4)(Dc, H, D) * (Dc ** -0.5)),
            "w_o": _w((lambda *s: torch.randn(*s, dtype=torch.bfloat16) * 0.4)(H, D, M) * ((H * D) ** -0.5)),
        }
    _A_in = _A_setup()

    def _B_setup():
        B, S, D, F = 1, 2048, 448, 1792
        return {
            "x": _w((lambda *s: torch.randn(*s, dtype=torch.bfloat16) * 0.05)(B, S, D)),
            "w1": _w((lambda *s: torch.randn(*s, dtype=torch.bfloat16) * 0.8)(D, F) * (D ** -0.5)),
            "w2": _w((lambda *s: torch.randn(*s, dtype=torch.bfloat16) * 0.1)(F, D) * (F ** -0.5)),
        }
    _B_in = _B_setup()

    return {
        "A_x": _A_in["x"],
        "A_c_kv": _A_in["c_kv"],
        "A_w_q": _A_in["w_q"],
        "A_w_uk": _A_in["w_uk"],
        "A_w_uv": _A_in["w_uv"],
        "A_w_o": _A_in["w_o"],
        "B_x": _B_in["x"],
        "B_w1": _B_in["w1"],
        "B_w2": _B_in["w2"],
    }

def reference(A_x, A_c_kv, A_w_q, A_w_uk, A_w_uv, A_w_o, B_x, B_w1, B_w2):
    def _A_ref(x, c_kv, w_q, w_uk, w_uv, w_o):
        B, Sq, M = x.shape[0], x.shape[1], x.shape[2]
        Sk = c_kv.shape[1]
        H, D = w_q.shape[1], w_q.shape[2]
        q = torch.einsum("bqm,mhd->bhqd", x, w_q)
        k = torch.einsum("bkc,chd->bhkd", c_kv, w_uk)
        v = torch.einsum("bkc,chd->bhkd", c_kv, w_uv)
        scores = torch.einsum("bhqd,bhkd->bhqk", q, k) * (D ** -0.5)
        off = Sk - Sq
        qi = torch.arange(Sq)[:, None]
        kj = torch.arange(Sk)[None, :]
        cmask = kj <= (qi + off)
        scores = torch.where(cmask[None, None], scores, -1e9)
        p = _softmax(scores, axis=-1)
        ctx = torch.einsum("bhqk,bhkd->bhqd", p, v)
        return torch.einsum("bhqd,hdm->bqm", ctx, w_o)

    def _B_ref(x, w1, w2):
        h = torch.einsum("bsd,df->bsf", x, w1)
        h = _silu(h)
        out = torch.einsum("bsf,fd->bsd", h, w2)
        return out

    x = A_x
    xn = _layernorm(x, axis=-1)
    return x + _A_ref(xn, A_c_kv, A_w_q, A_w_uk, A_w_uv, A_w_o) + _B_ref(xn, B_w1, B_w2)
```

```python
import re

REG_RE = re.compile(r'\b([vsa])(\d+)\b|\b([vsa])\[(\d+):(\d+)\]|\b(vcc|exec|m0|scc)\b')


def regs_of(tok):
    out = []
    for m in REG_RE.finditer(tok):
        if m.group(1):
            out.append((m.group(1), int(m.group(2))))
        elif m.group(3):
            for i in range(int(m.group(4)), int(m.group(5)) + 1):
                out.append((m.group(3), i))
        else:
            out.append((m.group(6), 0))
    return out


TRANS = ('v_exp_f32', 'v_log_f32', 'v_rcp_f32', 'v_rsq_f32', 'v_sqrt_f32', 'v_sin_f32', 'v_cos_f32')


class Ins:
    __slots__ = ('text', 'op', 'dst', 'src', 'kind', 'ws', 'passes', 'srcc', 'srcab', 'dpp', 'lds_dma', 'sdata')

    def __init__(self, text):
        self.text = text
        t = text.split(';')[0].strip()
        parts = t.split(None, 1)
        self.op = parts[0]
        ops = parts[1] if len(parts) > 1 else ''
        toks = []
        depth = 0
        cur = ''
        for ch in ops:
            if ch == '[':
                depth += 1
            if ch == ']':
                depth -= 1
            if ch == ',' and depth == 0:
                toks.append(cur.strip())
                cur = ''
            else:
                cur += ch
        if cur.strip():
            toks.append(cur.strip())
        op = self.op
        self.dst = []
        self.src = []
        self.kind = 'other'
        self.ws = 1
        self.passes = 0
        self.srcc = []
        self.srcab = []
        self.sdata = []
        self.dpp = ('quad_perm' in t or 'row_' in t or '_dpp' in op)
        self.lds_dma = False
        def R(i):
            if i >= len(toks):
                return []
            tok = toks[i]
            tok = re.sub(r'quad_perm:\[[^\]]*\]|op_sel(_hi)?:\[[^\]]*\]|neg_(lo|hi):\[[^\]]*\]', '', tok)
            return regs_of(tok)
        n = len(toks)
        if op == 's_nop':
            self.kind = 'nop'
            self.ws = int(toks[0], 0) + 1
        elif op.startswith('v_mfma'):
            self.kind = 'mfma'
            self.dst = R(0)
            self.srcab = R(1) + R(2)
            self.srcc = R(3)
            self.src = self.srcab + self.srcc
            self.passes = 8 if '32x32x16' in op else 4
        elif op.startswith('v_cmp'):
            self.kind = 'valu'
            self.dst = R(0)
            for i in range(1, n):
                self.src += R(i)
            if op.startswith('v_cmpx'):
                self.dst += [('exec', 0)]
        elif op.startswith('v_permlane') and 'swap' in op:
            self.kind = 'valu'
            self.dst = R(0) + R(1)
            self.src = R(0) + R(1)
        elif op.startswith('v_'):
            self.kind = 'valu'
            self.dst = R(0)
            k = 1
            if op.startswith(('v_add_co', 'v_sub_co', 'v_addc_co', 'v_subb_co', 'v_div_scale', 'v_mad_u64')):
                self.dst += R(1)
                k = 2
            for i in range(k, n):
                self.src += R(i)
            if op.startswith(('v_fmac', 'v_dot2c', 'v_pk_fmac')):
                self.src += R(0)
            if op.startswith('v_cndmask') and n == 3:
                self.src += [('vcc', 0)]
        elif op.startswith('ds_'):
            self.kind = 'ds'
            if op.startswith(('ds_read', 'ds_bpermute', 'ds_permute', 'ds_swizzle')):
                self.dst = R(0)
                for i in range(1, n):
                    self.src += R(i)
            else:
                for i in range(n):
                    self.src += R(i)
        elif op.startswith(('buffer_', 'global_')):
            self.kind = 'vmem'
            if ' lds' in t or '_lds_' in op:
                self.lds_dma = True
                for i in range(n):
                    self.src += R(i)
                self.src += [('m0', 0)]
            elif 'load' in op:
                self.dst = R(0)
                for i in range(1, n):
                    self.src += R(i)
            else:
                for i in range(n):
                    self.src += R(i)
                if op.startswith('buffer_store') or op.startswith('buffer_atomic'):
                    self.sdata = R(0)
                elif op.startswith('global_store'):
                    self.sdata = R(1)
                if 'atomic' in op and ' sc0' in t:
                    self.dst = R(0)
        elif op.startswith('s_'):
            self.kind = 'salu'
            if op.startswith(('s_cmp', 's_bitcmp')):
                self.dst = [('scc', 0)]
                for i in range(n):
                    self.src += R(i)
            elif op.startswith(('s_waitcnt', 's_barrier', 's_branch', 's_cbranch', 's_endpgm', 's_sleep', 's_setprio')):
                pass
            elif op.startswith('s_load') or op.startswith('s_mem') or op.startswith('s_buffer_load'):
                self.kind = 'smem'
                self.dst = R(0)
                for i in range(1, n):
                    self.src += R(i)
            else:
                self.dst = R(0)
                for i in range(1, n):
                    self.src += R(i)
                if 'saveexec' in op:
                    self.dst += [('exec', 0)]


def check_hazards(seq, name=''):
    probs = []
    n = len(seq)
    for i, p in enumerate(seq):
        dist = 0
        j = i + 1
        pd = set(p.dst)
        while j < n and dist < 21:
            c = seq[j]
            need = 0
            why = ''
            cs = set(c.src)
            cd = set(c.dst)
            if p.kind == 'valu':
                vd = {r for r in pd if r[0] in 'va'}
                sd = {r for r in pd if r[0] == 's' or r[0] == 'vcc'}
                if c.kind == 'mfma' and vd & cs:
                    need, why = 2, 'VALU->MFMA operand'
                if c.kind == 'valu' and c.op.startswith('v_permlane') and vd & cs:
                    need, why = max(need, 2), 'VALU->permlane'
                if c.kind == 'valu' and c.dpp and vd & cs:
                    need, why = max(need, 2), 'VALU->DPP'
                if c.kind == 'valu' and c.op.startswith(('v_readlane', 'v_readfirstlane')) and vd & cs:
                    need, why = max(need, 1), 'VALU->readlane'
                if p.op.startswith(TRANS) and c.kind == 'valu' and not c.op.startswith(TRANS) and vd & cs:
                    need, why = max(need, 1), 'trans->VALU'
                if c.kind == 'vmem' and sd & cs:
                    need, why = max(need, 5), 'VALU sgpr->VMEM'
                if c.kind == 'valu' and sd & cs:
                    need, why = max(need, 2), 'VALU sgpr->VALU const'
                    if c.op.startswith(('v_readlane', 'v_writelane')):
                        need = 4
                if ('exec', 0) in pd:
                    if c.kind == 'mfma':
                        need, why = max(need, 4), 'VALU exec->MFMA'
                    if c.kind == 'valu' and (c.dpp):
                        need, why = max(need, 5), 'VALU exec->DPP'
                    if c.kind == 'valu' and c.op.startswith(('v_readlane', 'v_readfirstlane', 'v_writelane', 'v_permlane')):
                        need, why = max(need, 4), 'VALU exec->lane op'
                if 'sdwa' in p.text and 'dst_sel' in p.text and c.kind == 'valu' and vd & cs:
                    need, why = max(need, 1), 'SDWA->VALU'
            if p.kind == 'salu' and ('m0', 0) in pd and c.lds_dma:
                need, why = 1, 'M0->LDS DMA'
            if p.kind == 'vmem' and p.sdata and ('x4' in p.op or 'x3' in p.op):
                if set(p.sdata) & cd:
                    need, why = (2 if c.kind == 'valu' else 1), 'store data WAR'
            if p.kind == 'mfma':
                big = {8: 12, 4: 8}[p.passes]
                if c.kind == 'mfma':
                    if pd & set(c.srcab):
                        need, why = big, 'MFMA D->MFMA A/B'
                    ov = pd & set(c.srcc)
                    if ov and (set(c.srcc) != pd or c.passes != p.passes):
                        need, why = max(need, {8: 10, 4: 6}[p.passes]), 'MFMA D->SrcC partial'
                    if (pd & cd) and not ov:
                        need, why = max(need, {8: 10, 4: 6}[p.passes]), 'MFMA D WAW'
                elif c.kind in ('valu', 'vmem', 'ds'):
                    if pd & (cs | cd):
                        need, why = big, 'MFMA D->VALU/mem'
                    if c.kind == 'valu' and set(p.srcc) & cd:
                        need, why = max(need, {8: 7, 4: 3}[p.passes]), 'MFMA SrcC WAR'
            if need > dist:
                probs.append(f'{name}: {why}: need {need} have {dist}: [{i}] {p.text.strip()}  ->  [{j}] {c.text.strip()}')
            dist += c.ws
            j += 1
    return probs


class Asm:
    def __init__(self):
        self.items = []

    def i(self, text):
        for ln in text.strip().split('\n'):
            ln = ln.strip()
            if not ln or ln.startswith(';'):
                continue
            self.items.append(('i', Ins(ln)))

    def label(self, name):
        self.items.append(('l', name))

    def raw(self, text):
        self.items.append(('r', text))

    def comment(self, text):
        self.items.append(('r', '    ; ' + text))

    def text(self):
        out = []
        for k, v in self.items:
            if k == 'i':
                out.append('    ' + v.text)
            elif k == 'l':
                out.append(v + ':')
            else:
                out.append(v)
        return '\n'.join(out) + '\n'

    def check(self, name=''):
        ins = []
        labels = {}
        for k, v in self.items:
            if k == 'i':
                ins.append(v)
            elif k == 'l':
                labels[v] = len(ins)
        probs = []
        seg = []
        for x in ins:
            seg.append(x)
            if x.op in ('s_branch', 's_endpgm'):
                probs += check_hazards(seg, name)
                seg = []
        probs += check_hazards(seg, name)
        for idx, x in enumerate(ins):
            if x.op.startswith(('s_cbranch', 's_branch')):
                tgt = x.text.split()[1]
                if tgt in labels:
                    t = labels[tgt]
                    pre = ins[max(0, idx - 24):idx + 1]
                    for q in range(len(pre) - 2, -1, -1):
                        if pre[q].op in ('s_branch', 's_endpgm'):
                            pre = pre[q + 1:]
                            break
                    post = []
                    for y in ins[t:t + 24]:
                        post.append(y)
                        if y.op in ('s_branch', 's_endpgm'):
                            break
                    pp = check_hazards(pre + post, name + f'(edge {tgt})')
                    probs += pp
        return sorted(set(probs))


def interleave(a, mfmas, fillers, start=0, per=None):
    n = len(mfmas)
    slots = [[] for _ in range(n)]
    ng = n - start
    for k, f in enumerate(fillers):
        g = start + (k * ng) // max(1, len(fillers)) if per is None else min(n - 1, start + k // per)
        slots[g].append(f)
    for m, s in zip(mfmas, slots):
        a.i(m)
        for f in s:
            if isinstance(f, (list, tuple)):
                for x in f:
                    a.i(x)
            else:
                a.i(f)
```

```python
from asmlib import Asm
import gen as G

TS = 34
LDS_K = 0
LDS_V = 65536
PART_STRIDE = 4 * (32 * 1024 + 1024)
C_SCALE = 0x3db8aa3b
C_INV = 0x41317218
T_RAW = 0x42b17218
NEG = 0xf149f2ca
MINIT = 0xe0ad78ec
MINIT_C = 0xdefa4488

V_LANE16 = 2
V_DMA = 3
V_KRD = 4
V_VRD = 5
V_MC = 6
V_MTHR = 7
V_L = 8
V_U = 9
V_TMAX = 10
V_T = 11
V_NEG = 20
V_ZERO = 21
V_ST2 = 22
V_P = 88
V_S = [96, 112]
V_O = 128
A_Q = 0
A_Q2 = 64
A_F = 128
S_KV = 8
S_QS = 12
S_OS = 16
S_DBG = 60
S_W = 36
S_N = 37
S_NLAST = 38
S_KCUR = 39
S_VCUR = 40
S_END1 = 41
S_KREM = 42
S_VREM = 43
S_KWR = 44
S_VWR = 45
S_KSL = 46
S_VSL = 47
S_DELTA = 48
S_EVE = 49
S_EVO = 50
S_C = 51
S_T0 = 52
S_T1 = 53
S_T2 = 54
S_VWEND = 55
S_DELTA2 = 56
S_TYPE = 57
S_NR = 58
S_V2 = 64
S_PAIR = 68
S_HEAD = 69
S_RT = 59


def frag(k):
    b = A_F + 4 * (k & 7)
    return f'a[{b}:{b+3}]'


def rd(pos):
    p = pos & 31
    if p < 16:
        return f'ds_read_b128 {frag(pos)}, v{V_KRD} offset:{p*1024}'
    q = p - 16
    step, dt = q >> 3, q & 7
    return f'ds_read_b128 {frag(pos)}, v{V_VRD} offset:{(dt*2+step)*1024}'


def qk_mfma(k, S):
    c = '0' if k == 0 else f'v[{S}:{S+15}]'
    return f'v_mfma_f32_32x32x16_bf16 v[{S}:{S+15}], {frag(k)}, a[{A_Q+4*k}:{A_Q+4*k+3}], {c}'


def pv_mfma(q):
    step, dt = q >> 3, q & 7
    o = V_O + 16 * dt
    return f'v_mfma_f32_32x32x16_bf16 v[{o}:{o+15}], {frag(16+q)}, v[{V_P+4*step}:{V_P+4*step+3}], v[{o}:{o+15}]'


def dmaK():
    return [f's_mov_b32 m0, s{S_KWR}'] + [
        f'buffer_load_dwordx4 v{V_DMA}, s[{S_KV}:{S_KV+3}], s{S_KCUR} offen offset:{j*1024} lds' for j in range(4)]


def dmaV():
    return [f's_mov_b32 m0, s{S_VWR}'] + [
        f'buffer_load_dwordx4 v{V_DMA}, s[{S_V2}:{S_V2+3}], s{S_VCUR} offen offset:{j*1024} lds' for j in range(4)]


def advK():
    return [f's_add_u32 s{S_KCUR}, s{S_KCUR}, 32768',
            f's_cmp_eq_u32 s{S_KCUR}, s{S_END1}',
            f's_cselect_b32 s{S_KCUR}, 0, s{S_KCUR}',
            f's_sub_u32 s{S_KREM}, s{S_KREM}, 1',
            f's_cmp_gt_i32 s{S_KREM}, 0',
            f's_cselect_b32 s{S_KV+2}, s{S_NR}, 0',
            f's_add_u32 s{S_KWR}, s{S_KWR}, 16384',
            f's_and_b32 s{S_KWR}, s{S_KWR}, 0xffff']


def advV():
    return [f's_add_u32 s{S_VCUR}, s{S_VCUR}, 32768',
            f's_cmp_eq_u32 s{S_VCUR}, s{S_END1}',
            f's_cselect_b32 s{S_VCUR}, 0, s{S_VCUR}',
            f's_sub_u32 s{S_VREM}, s{S_VREM}, 1',
            f's_cmp_gt_i32 s{S_VREM}, 0',
            f's_cselect_b32 s{S_V2+2}, s{S_NR}, 0',
            f's_add_u32 s{S_VWR}, s{S_VWR}, 16384',
            f's_cmp_ge_u32 s{S_VWR}, s{S_VWEND}',
            f's_cselect_b32 s{S_T0}, 81920, 0',
            f's_sub_u32 s{S_VWR}, s{S_VWR}, s{S_T0}']


def adv_krd():
    return [f's_add_u32 s{S_KSL}, s{S_KSL}, 16384',
            f's_and_b32 s{S_KSL}, s{S_KSL}, 0xffff',
            f'v_add_u32 v{V_KRD}, s{S_KSL}, v{V_LANE16}']


def adv_vrd():
    return [f's_add_u32 s{S_VSL}, s{S_VSL}, 16384',
            f's_cmp_ge_u32 s{S_VSL}, {LDS_V + 81920}',
            f's_cselect_b32 s{S_VSL}, {LDS_V}, s{S_VSL}',
            f'v_add_u32 v{V_VRD}, s{S_VSL}, v{V_LANE16}']


def emit_seq(a, x):
    for f in x:
        if isinstance(f, tuple):
            a.label(f[1])
        else:
            a.i(f)


def exp_ops(S):
    g = [[] for _ in range(20)]
    for r in range(16):
        g[r].append(f'v_fma_f32 v{S+r}, v{S+r}, s{S_C}, -v{V_MC}')
        g[r + 1].append(f'v_exp_f32 v{S+r}, v{S+r}')
    for i in range(8):
        g[2 * i + 3].append(f'v_cvt_pk_bf16_f32 v{V_P+i}, v{S+2*i}, v{S+2*i+1}')
    return g


def max_ops(S):
    o = [f'v_max3_f32 v{V_TMAX}, v{S}, v{S+1}, v{S+2}']
    for i in range(6):
        o.append(f'v_max3_f32 v{V_TMAX}, v{V_TMAX}, v{S+3+2*i}, v{S+4+2*i}')
    o.append(f'v_max_f32 v{V_TMAX}, v{V_TMAX}, v{S+15}')
    return o


def mask_block(a, S, lbl):
    a.label(lbl)
    a.i(f'v_add_u32 v{V_T}, s{S_DELTA}, v{V_U}')
    for g in range(0, 16, 4):
        for r in range(g, g + 4):
            c = (r & 3) + 8 * (r >> 2)
            a.i(f'v_cmp_gt_i32 s[{20+2*(r&3)}:{21+2*(r&3)}], {c}, v{V_T}')
        for r in range(g, g + 4):
            a.i(f'v_cndmask_b32 v{S+r}, v{S+r}, v{V_NEG}, s[{20+2*(r&3)}:{21+2*(r&3)}]')
    a.i(f's_branch {lbl}_ret')


def rescale_block(a, lbl):
    a.label(lbl)
    t0, t1 = V_T, V_T + 1
    a.i(f'v_mov_b32 v{t0}, v{V_TMAX}')
    a.i('s_nop 1')
    a.i(f'v_permlane32_swap_b32 v{V_TMAX}, v{t0}')
    a.i('s_nop 1')
    a.i(f'v_max_f32 v{t0}, v{V_TMAX}, v{t0}')
    a.i(f'v_mul_f32 v{t0}, s{S_C}, v{t0}')
    a.i(f'v_max_f32 v{t0}, v{t0}, v{V_MC}')
    a.i(f'v_sub_f32 v{t1}, v{V_MC}, v{t0}')
    a.i(f'v_exp_f32 v{t1}, v{t1}')
    a.i(f'v_mov_b32 v{V_MC}, v{t0}')
    a.i(f'v_mul_f32 v{V_MTHR}, {C_INV:#x}, v{t0}')
    a.i(f'v_add_f32 v{V_MTHR}, {T_RAW:#x}, v{V_MTHR}')
    a.i(f'v_mul_f32 v{V_L}, v{V_L}, v{t1}')
    a.i('s_nop 3')
    for r in range(128):
        a.i(f'v_mul_f32 v{V_O+r}, v{V_O+r}, v{t1}')
    a.i('s_nop 1')
    a.i(f's_branch {lbl}_ret')


def reset_state(a):
    a.i(f'v_mov_b32 v{V_MC}, {MINIT_C:#x}')
    a.i(f'v_mov_b32 v{V_MTHR}, {MINIT:#x}')
    a.i(f'v_mov_b32 v{V_L}, 0')
    for r in range(128):
        a.i(f'v_mov_b32 v{V_O+r}, 0')


def body(a, par):
    Sc, Sn = V_S[par], V_S[par ^ 1]
    L = f'L_k2_b{par}'
    eg = exp_ops(Sc)
    slots = [[] for _ in range(32)]
    pre = [[] for _ in range(32)]
    for k in range(32):
        if k % 2 == 0:
            pre[k].append('s_waitcnt lgkmcnt(4)')
        if k == 10:
            slots[k] += []
        slots[k].append(rd(k + 6))
        if k < 20:
            slots[k] += eg[k]
    slots[12] += adv_krd()
    slots[16] = ['s_waitcnt vmcnt(16)', 's_barrier'] + slots[16]
    for r in range(16):
        slots[16 + r].append(f'v_add_f32 v{V_L}, v{V_L}, v{Sc+r}')
    dk, dv = dmaK(), dmaV()
    slots[16].append(dk[0])
    for j in range(4):
        slots[17 + 2 * j].append(dk[1 + j])
    slots[24].append(dv[0])
    for j in range(4):
        slots[25 + 2 * j if j < 3 else 30].append(dv[1 + j])
    ak = advK()
    slots[24] += ak[:3]
    slots[26] += ak[3:6]
    slots[28] += ak[6:]
    slots[19] += [f's_cmp_lt_i32 s{S_DELTA}, 1', f's_cbranch_scc1 {L}_mask', ('L', f'{L}_mask_ret'),
                  f's_sub_u32 s{S_DELTA}, s{S_DELTA}, 32']
    mo = max_ops(Sn)
    for i, m in enumerate(mo):
        slots[20 + i].append(m)
    slots[27] += adv_vrd()
    tail = advV()
    ev = S_EVE if par == 0 else S_EVO
    tail += [f's_cmp_eq_u32 s{S_N}, s{ev}', f's_cbranch_scc1 {L}_evt', ('L', f'{L}_evt_ret'),
             f'v_cmp_gt_f32 vcc, v{V_TMAX}, v{V_MTHR}',
             f's_add_u32 s{S_N}, s{S_N}, 1',
             f's_cbranch_vccnz {L}_resc', ('L', f'{L}_resc_ret')]
    slots[31] += tail
    a.label(L)
    for k in range(32):
        emit_seq(a, pre[k])
        a.i(qk_mfma(k, Sn) if k < 16 else pv_mfma(k - 16))
        emit_seq(a, slots[k])


def gen_k2(a):
    stamp = G.stamp
    a.raw('.p2align 8')
    a.raw('.globl k2_kernel')
    a.raw('.type k2_kernel,@function')
    a.label('k2_kernel')
    a.i('s_cmp_ge_u32 s2, 256')
    a.i('s_cbranch_scc1 L_k2_end')
    stamp(a, 0)
    a.i('s_load_dwordx4 s[32:35], s[0:1], 80')
    a.i('v_and_b32 v1, 63, v0')
    a.i('v_lshrrev_b32 v2, 6, v0')
    a.i('s_nop 0')
    a.i(f'v_readfirstlane_b32 s{S_W}, v2')
    a.i(f'v_lshlrev_b32 v{V_LANE16}, 4, v1')
    a.i(f'v_lshlrev_b32 v{V_DMA}, 4, v0')
    a.i('s_and_b32 s3, s2, 7')
    a.i('s_lshl_b32 s3, s3, 1')
    a.i('s_bfe_u32 s4, s2, 0x10003')
    a.i(f's_add_u32 s{S_HEAD}, s3, s4')
    a.i('s_bfe_u32 s5, s2, 0x30004')
    a.i(f's_lshr_b32 s{S_TYPE}, s2, 7')
    a.i(f's_and_b32 s{S_PAIR}, s2, 127')
    a.i('s_sub_u32 s6, 15, s5')
    a.i(f's_lshl_b32 s{S_T0}, s{S_W}, 12')
    a.i(f'v_add_u32 v{V_DMA}, s{S_T0}, v{V_LANE16}')
    a.i('s_lshl_b32 s7, s6, 2')
    a.i('s_add_u32 s7, s7, 4')
    a.i(f's_sub_u32 s{S_T1}, s7, {TS}')
    a.i(f's_lshl_b32 s{S_END1}, s7, 15')
    a.i(f's_cmp_eq_u32 s{S_TYPE}, 0')
    a.i(f's_cselect_b32 s{S_END1}, s{S_END1}, -1')
    a.i(f's_cselect_b32 s{S_KCUR}, {TS*32768}, 0')
    a.i(f's_mov_b32 s{S_T2}, {TS}')
    a.i(f's_cselect_b32 s{S_KREM}, {68-TS}, s{S_T2}')
    a.i(f's_sub_u32 s{S_T0}, s{S_T1}, 2')
    a.i(f's_cmp_eq_u32 s{S_TYPE}, 0')
    a.i(f's_cselect_b32 s{S_EVE}, s{S_T0}, -1')
    a.i(f's_sub_u32 s{S_T0}, s{S_T1}, 1')
    a.i(f's_cmp_eq_u32 s{S_TYPE}, 0')
    a.i(f's_cselect_b32 s{S_EVO}, s{S_T0}, -1')
    a.i(f's_mov_b32 s{S_VCUR}, s{S_KCUR}')
    a.i(f's_mov_b32 s{S_VREM}, s{S_KREM}')
    a.i(f's_sub_u32 s{S_NLAST}, s{S_KREM}, 2')
    a.i(f's_lshl_b32 s{S_T0}, s6, 7')
    a.i(f's_lshl_b32 s{S_T2}, s{S_W}, 5')
    a.i(f's_add_u32 s{S_DELTA}, s{S_T0}, s{S_T2}')
    a.i(f's_lshr_b32 s{S_T0}, s{S_KCUR}, 10')
    a.i(f's_sub_u32 s{S_DELTA}, s{S_DELTA}, s{S_T0}')
    a.i(f's_lshl_b32 s{S_T0}, s5, 7')
    a.i(f's_add_u32 s{S_DELTA2}, s{S_T0}, s{S_T2}')
    a.i(f's_lshl_b32 s3, s6, 2')
    a.i(f's_add_u32 s3, s3, s{S_W}')
    a.i(f's_lshl_b32 s4, s5, 2')
    a.i(f's_add_u32 s4, s4, s{S_W}')
    a.i(f's_cmp_eq_u32 s{S_TYPE}, 0')
    a.i(f's_cselect_b32 s{S_RT}, s4, s3')
    a.i('s_lshl_b32 s3, s3, 14')
    a.i('s_lshl_b32 s4, s4, 14')
    a.i(f's_lshl_b32 s{S_KWR}, s{S_W}, 12')
    a.i(f's_add_u32 s{S_VWR}, s{S_KWR}, {LDS_V}')
    a.i(f's_add_u32 s{S_VWEND}, s{S_VWR}, 81920')
    a.i(f's_mov_b32 s{S_KSL}, {LDS_K}')
    a.i(f's_mov_b32 s{S_VSL}, {LDS_V}')
    a.i(f'v_mov_b32 v{V_KRD}, v{V_LANE16}')
    a.i(f'v_add_u32 v{V_VRD}, {LDS_V}, v{V_LANE16}')
    a.i(f's_mov_b32 s{S_C}, {C_SCALE:#x}')
    a.i(f's_mov_b32 s{S_N}, 0')
    a.i(f'v_and_b32 v{V_U}, 31, v1')
    a.i(f'v_lshrrev_b32 v{V_T}, 5, v1')
    a.i(f'v_lshlrev_b32 v{V_T}, 2, v{V_T}')
    a.i(f'v_sub_u32 v{V_U}, v{V_U}, v{V_T}')
    a.i(f'v_mov_b32 v{V_NEG}, {NEG:#x}')
    a.i(f'v_mov_b32 v{V_ZERO}, 0')
    a.i(f'v_add_u32 v{V_ST2}, 4096, v{V_LANE16}')
    a.i('s_waitcnt lgkmcnt(0)')
    a.i(f's_lshl_b32 s{S_T0}, s{S_HEAD}, 21')
    a.i(f's_add_u32 s{S_T0}, s{S_T0}, {G.WS_KV}')
    a.i(f's_add_u32 s{S_KV}, s34, s{S_T0}')
    a.i(f's_addc_u32 s{S_KV+1}, s35, 0')
    a.i(f's_mov_b32 s{S_NR}, {2<<20}')
    a.i(f's_mov_b32 s{S_KV+2}, s{S_NR}')
    a.i(f's_mov_b32 s{S_KV+3}, 0x00020000')
    a.i(f's_add_u32 s{S_V2}, s{S_KV}, 16384')
    a.i(f's_addc_u32 s{S_V2+1}, s{S_KV+1}, 0')
    a.i(f's_mov_b32 s{S_V2+2}, s{S_NR}')
    a.i(f's_mov_b32 s{S_V2+3}, 0x00020000')
    a.i(f's_lshl_b32 s{S_T0}, s{S_HEAD}, 20')
    a.i(f's_add_u32 s{S_T0}, s{S_T0}, {G.WS_Q}')
    a.i(f's_add_u32 s{S_QS}, s34, s{S_T0}')
    a.i(f's_addc_u32 s{S_QS+1}, s35, 0')
    a.i(f's_mov_b32 s{S_QS+2}, {1<<20}')
    a.i(f's_mov_b32 s{S_QS+3}, 0x00020000')
    G.srd(a, S_DBG, 32, 33, 256)

    def qload(base, soff):
        for k in range(16):
            if k % 4 == 0 and k:
                a.i(f's_add_u32 s{soff}, s{soff}, 4096')
            a.i(f'buffer_load_dwordx4 a[{base+4*k}:{base+4*k+3}], v{V_LANE16}, s[{S_QS}:{S_QS+3}], s{soff} offen offset:{(k&3)*1024}')

    def issue(x, adv):
        a.i(x[0])
        a.i('s_nop 0')
        for y in x[1:]:
            a.i(y)
        for y in adv:
            a.i(y)
    issue(dmaK(), advK())
    qload(A_Q, 3)
    issue(dmaK(), advK())
    issue(dmaV(), advV())
    qload(A_Q2, 4)
    issue(dmaK(), advK())
    issue(dmaV(), advV())
    issue(dmaK(), advK())
    issue(dmaV(), advV())
    reset_state(a)
    stamp(a, 1)
    a.i('s_waitcnt vmcnt(40)')
    a.i('s_barrier')
    stamp(a, 2)
    S0 = V_S[0]
    for p in range(6):
        a.i(rd(p))
    for k in range(16):
        if k % 2 == 0:
            a.i(f's_waitcnt lgkmcnt({min(4, max(0, 14 - k))})')
        a.i(qk_mfma(k, S0))
        if k + 6 < 16:
            a.i(rd(k + 6))
    emit_seq(a, adv_krd())
    a.i('s_waitcnt vmcnt(32)')
    a.i('s_barrier')
    issue(dmaK(), advK())
    issue(dmaV(), advV())
    for p in range(6):
        a.i(rd(p))
    a.i(f's_cmp_lt_i32 s{S_DELTA}, 1')
    a.i('s_cbranch_scc1 L_k2_p_mask')
    a.label('L_k2_p_mask_ret')
    a.i(f's_sub_u32 s{S_DELTA}, s{S_DELTA}, 32')
    for m in max_ops(S0):
        a.i(m)
    a.i(f'v_cmp_gt_f32 vcc, v{V_TMAX}, v{V_MTHR}')
    a.i('s_nop 0')
    a.i('s_cbranch_vccnz L_k2_p_resc')
    a.label('L_k2_p_resc_ret')
    stamp(a, 3)
    body(a, 0)
    a.i(f's_cmp_gt_u32 s{S_N}, s{S_NLAST}')
    a.i('s_cbranch_scc1 L_k2_tail')
    body(a, 1)
    a.i('s_branch L_k2_b0')
    a.label('L_k2_tail')
    stamp(a, 4)
    S1 = V_S[1]
    eg = exp_ops(S1)
    a.i('s_waitcnt lgkmcnt(0)')
    for p in range(16, 22):
        a.i(rd(p))
    for gi, g in enumerate(eg):
        if gi == 17:
            a.i('s_nop 0')
        for x in g:
            a.i(x)
    a.i('s_nop 1')
    for q in range(16):
        if q % 2 == 0:
            a.i(f's_waitcnt lgkmcnt({min(4, max(0, 14 - q))})')
        a.i(pv_mfma(q))
        if 16 + q + 6 < 32:
            a.i(rd(16 + q + 6))
        a.i(f'v_add_f32 v{V_L}, v{V_L}, v{S1+q}')
    stamp(a, 5)
    a.i(f's_mul_i32 s{S_T0}, s{S_RT}, {G.CTX_RT}')
    a.i(f's_lshl_b32 s{S_T1}, s{S_HEAD}, 14')
    a.i(f's_add_u32 s{S_T0}, s{S_T0}, s{S_T1}')
    a.i(f's_add_u32 s{S_T0}, s{S_T0}, {G.WS_CTX}')
    a.i(f's_add_u32 s{S_QS}, s34, s{S_T0}')
    a.i(f's_addc_u32 s{S_QS+1}, s35, 0')
    a.i(f's_mov_b32 s{S_QS+2}, 16384')
    gA, gB, t0, t1 = V_T, V_T + 1, V_T + 2, V_T + 3
    a.i(f's_cmp_eq_u32 s{S_TYPE}, 0')
    a.i('s_cbranch_scc1 L_k2_fin_nomerge')
    part_srd(a)
    a.i(f's_lshr_b32 s{S_T0}, s{S_PAIR}, 3')
    a.i(f's_lshl_b32 s{S_T0}, s{S_T0}, 2')
    a.i(f's_and_b32 s{S_T1}, s{S_PAIR}, 7')
    a.i(f's_lshl_b32 s{S_T1}, s{S_T1}, 2')
    a.i(f's_add_u32 s{S_T1}, s{S_T1}, s{S_W}')
    a.i(f's_mov_b32 s{S_T2}, 0')
    a.label('L_k2_poll')
    a.i(f'buffer_load_dword v{t0}, v{V_ZERO}, s[{S_DBG}:{S_DBG+3}], s{S_T0} offen sc1')
    a.i('s_waitcnt vmcnt(0)')
    a.i(f'v_readfirstlane_b32 s3, v{t0}')
    a.i('s_nop 3')
    a.i(f's_bitcmp1_b32 s3, s{S_T1}')
    a.i('s_cbranch_scc1 L_k2_pollok')
    a.i(f's_add_u32 s{S_T2}, s{S_T2}, 1')
    a.i(f's_cmp_ge_u32 s{S_T2}, 0x40000')
    a.i('s_cbranch_scc1 L_k2_pollok')
    a.i('s_sleep 2')
    a.i('s_branch L_k2_poll')
    a.label('L_k2_pollok')
    a.i('buffer_inv sc1')
    a.i('s_waitcnt vmcnt(0)')
    stamp(a, 6)
    mB, lB = V_T + 4, V_T + 5
    a.i(f'v_lshrrev_b32 v{t1}, 2, v{V_LANE16}')
    a.i(f's_mov_b32 s{S_T0}, 32768')
    a.i(f'buffer_load_dword v{mB}, v{t1}, s[{S_OS}:{S_OS+3}], s{S_T0} offen sc1')
    a.i(f'buffer_load_dword v{lB}, v{t1}, s[{S_OS}:{S_OS+3}], s{S_T0} offen offset:256 sc1')
    stage = list(range(24, 128, 4))
    nst = 24
    def ld(c):
        r = stage[c % nst]
        if c % 4 == 0:
            a.i(f's_mov_b32 s{S_T1}, {c*1024}')
        a.i(f'buffer_load_dwordx4 v[{r}:{r+3}], v{V_LANE16}, s[{S_OS}:{S_OS+3}], s{S_T1} offen offset:{(c&3)*1024} sc1')
    for c in range(nst):
        ld(c)
    a.i(f's_waitcnt vmcnt({nst})')
    a.i(f'v_max_f32 v{t0}, v{V_MC}, v{mB}')
    a.i(f'v_sub_f32 v{gA}, v{V_MC}, v{t0}')
    a.i(f'v_sub_f32 v{gB}, v{mB}, v{t0}')
    a.i(f'v_exp_f32 v{gA}, v{gA}')
    a.i(f'v_exp_f32 v{gB}, v{gB}')
    a.i('s_nop 0')
    a.i(f'v_mul_f32 v{V_L}, v{V_L}, v{gA}')
    a.i(f'v_fmac_f32 v{V_L}, v{lB}, v{gB}')
    a.i(f'v_mov_b32 v{t0}, v{V_L}')
    a.i('s_nop 1')
    a.i(f'v_permlane32_swap_b32 v{V_L}, v{t0}')
    a.i('s_nop 1')
    a.i(f'v_add_f32 v{V_L}, v{V_L}, v{t0}')
    a.i(f'v_rcp_f32 v{V_L}, v{V_L}')
    a.i('s_nop 0')
    a.i(f'v_mul_f32 v{gA}, v{gA}, v{V_L}')
    a.i(f'v_mul_f32 v{gB}, v{gB}, v{V_L}')
    outstanding = nst
    issued = nst
    order = [('l', c) for c in range(nst)]
    for f in range(16):
        c0, c1 = 2 * f, 2 * f + 1
        idx = order.index(('l', c1))
        a.i(f's_waitcnt vmcnt({len(order) - 1 - idx})')
        o = V_O + 8 * f
        for j in range(8):
            r = stage[(c0 + (j >> 2)) % nst] + (j & 3)
            a.i(f'v_mul_f32 v{o+j}, v{o+j}, v{gA}')
            a.i(f'v_fmac_f32 v{o+j}, v{r}, v{gB}')
        for c in (c0 + nst, c1 + nst):
            if c < 32:
                ld(c)
                order.append(('l', c))
        for i in range(4):
            a.i(f'v_cvt_pk_bf16_f32 v{o+i}, v{o+2*i}, v{o+2*i+1}')
        if f % 4 == 0:
            a.i(f's_mov_b32 s{S_T2}, {f*1024}')
        a.i(f'buffer_store_dwordx4 v[{o}:{o+3}], v{V_LANE16}, s[{S_QS}:{S_QS+3}], s{S_T2} offen offset:{(f&3)*1024}')
        order.append(('s', f))
    a.i('s_branch L_k2_done')
    a.label('L_k2_fin_nomerge')
    stamp(a, 6)
    a.i(f'v_mov_b32 v{t0}, v{V_L}')
    a.i('s_nop 1')
    a.i(f'v_permlane32_swap_b32 v{V_L}, v{t0}')
    a.i('s_nop 1')
    a.i(f'v_add_f32 v{V_L}, v{V_L}, v{t0}')
    a.i(f'v_rcp_f32 v{gA}, v{V_L}')
    a.i('s_nop 3')
    for f in range(16):
        o = V_O + 8 * f
        for j in range(8):
            a.i(f'v_mul_f32 v{o+j}, v{o+j}, v{gA}')
        for i in range(4):
            a.i(f'v_cvt_pk_bf16_f32 v{o+i}, v{o+2*i}, v{o+2*i+1}')
        if f % 4 == 0:
            a.i(f's_mov_b32 s{S_T2}, {f*1024}')
        a.i(f'buffer_store_dwordx4 v[{o}:{o+3}], v{V_LANE16}, s[{S_QS}:{S_QS+3}], s{S_T2} offen offset:{(f&3)*1024}')
    a.label('L_k2_done')
    stamp(a, 7)
    G.stamp_flush(a, 8, 34, 35, 1, S_W)
    a.label('L_k2_end')
    a.i('s_endpgm')
    mask_block(a, V_S[0], 'L_k2_p_mask')
    rescale_block(a, 'L_k2_p_resc')
    for par in range(2):
        L = f'L_k2_b{par}'
        mask_block(a, V_S[par ^ 1], f'{L}_mask')
        rescale_block(a, f'{L}_resc')
    L = 'L_k2_b0'
    a.label(f'{L}_evt')
    a.i(f's_add_u32 s{S_T0}, s{S_EVE}, 1')
    a.i(f's_cmp_eq_u32 s{S_T0}, s{S_EVO}')
    a.i(f's_cbranch_scc0 {L}_evt_sig')
    for r in range(64):
        a.i(f'v_accvgpr_mov_b32 a{A_Q+r}, a{A_Q2+r}')
    a.i(f's_mov_b32 s{S_DELTA}, s{S_DELTA2}')
    a.i(f's_add_u32 s{S_EVE}, s{S_EVE}, 4')
    a.i('s_nop 1')
    a.i(f's_branch {L}_evt_ret')
    a.label(f'{L}_evt_sig')
    a.i(f's_lshr_b32 s{S_T0}, s{S_PAIR}, 3')
    a.i(f's_lshl_b32 s{S_T0}, s{S_T0}, 2')
    a.i(f's_and_b32 s{S_T1}, s{S_PAIR}, 7')
    a.i(f's_lshl_b32 s{S_T1}, s{S_T1}, 2')
    a.i(f's_add_u32 s{S_T1}, s{S_T1}, s{S_W}')
    a.i(f's_lshl_b32 s{S_T1}, 1, s{S_T1}')
    a.i(f'v_mov_b32 v{V_T}, s{S_T1}')
    a.i('s_mov_b64 exec, 1')
    a.i(f'buffer_atomic_or v{V_T}, v{V_ZERO}, s[{S_DBG}:{S_DBG+3}], s{S_T0} offen sc1')
    a.i('s_mov_b64 exec, -1')
    a.i(f's_mov_b32 s{S_EVE}, -1')
    a.i(f's_branch {L}_evt_ret')
    L = 'L_k2_b1'
    a.label(f'{L}_evt')
    part_srd(a)
    a.i(f'v_lshrrev_b32 v{V_T}, 2, v{V_LANE16}')
    a.i(f's_mov_b32 s{S_T0}, 32768')
    a.i(f'buffer_store_dword v{V_MC}, v{V_T}, s[{S_OS}:{S_OS+3}], s{S_T0} offen sc1')
    a.i(f'buffer_store_dword v{V_L}, v{V_T}, s[{S_OS}:{S_OS+3}], s{S_T0} offen offset:256 sc1')
    a.i('s_nop 3')
    for c in range(32):
        if c % 4 == 0:
            a.i(f's_mov_b32 s{S_T1}, {c*1024}')
        r = V_O + 4 * c
        a.i(f'buffer_store_dwordx4 v[{r}:{r+3}], v{V_LANE16}, s[{S_OS}:{S_OS+3}], s{S_T1} offen offset:{(c&3)*1024} sc1')
    a.i('s_nop 1')
    reset_state(a)
    a.i(f's_mov_b32 s{S_EVO}, -1')
    a.i(f's_branch {L}_evt_ret')


def part_srd(a):
    a.i(f's_mul_i32 s{S_T0}, s{S_PAIR}, {PART_STRIDE}')
    a.i(f's_mul_i32 s{S_T1}, s{S_W}, {PART_STRIDE//4}')
    a.i(f's_add_u32 s{S_T0}, s{S_T0}, s{S_T1}')
    a.i(f's_add_u32 s{S_T0}, s{S_T0}, {G.WS_PART}')
    a.i(f's_add_u32 s{S_OS}, s34, s{S_T0}')
    a.i(f's_addc_u32 s{S_OS+1}, s35, 0')
    a.i(f's_mov_b32 s{S_OS+2}, {PART_STRIDE//4}')
    a.i(f's_mov_b32 s{S_OS+3}, 0x00020000')
```

```python
from asmlib import Asm
import gen as G

S_A = 8
S_B = 12
S_O = 16
S_W = 36
S_G = 37
S_AOFF = 38
S_BOFF = 39
S_LG = 40
S_WR = 41
S_T0 = 42
S_T1 = 43
S_T2 = 44
S_NRA = 45
S_NRB = 46
S_AOFF2 = 47
V_L16 = 2
V_A1 = 3
V_BD = 4
V_RD = 12
V_T = 14
ACC = 32
BF = 96
AF = 0
SLOT = 8192
NG = 23


def loads(slot):
    o = [f's_add_u32 m0, s{S_WR}, {slot*SLOT}', 's_nop 0']
    for j in range(4):
        o.append(f'buffer_load_dwordx4 v{V_BD+j}, s[{S_B}:{S_B+3}], s{S_BOFF} offen offset:{j*1024} lds')
    o += [f's_add_u32 m0, s{S_WR}, {slot*SLOT+4096}', 's_nop 0']
    for j in range(4):
        o.append(f'buffer_load_dwordx4 v{V_BD+4+j}, s[{S_B}:{S_B+3}], s{S_BOFF} offen offset:{j*1024} lds')
    for s in range(4):
        r = AF + slot * 32 + s * 8
        o.append(f'buffer_load_dwordx4 a[{r}:{r+3}], v{V_L16}, s[{S_A}:{S_A+3}], s{S_AOFF} offen offset:{s*1024}')
        o.append(f'buffer_load_dwordx4 a[{r+4}:{r+7}], v{V_A1}, s[{S_A}:{S_A+3}], s{S_AOFF} offen offset:{s*1024}')
    o += [f's_add_u32 s{S_LG}, s{S_LG}, 1',
          f's_add_u32 s{S_AOFF}, s{S_AOFF}, 4096',
          f's_add_u32 s{S_BOFF}, s{S_BOFF}, {64*896}',
          f's_cmp_eq_u32 s{S_LG}, 16',
          f's_cselect_b32 s{S_AOFF}, s{S_AOFF2}, s{S_AOFF}',
          f's_cselect_b32 s{S_BOFF}, 0, s{S_BOFF}',
          f's_cselect_b32 s{S_B}, s28, s{S_B}',
          f's_cselect_b32 s{S_B+1}, s29, s{S_B+1}',
          f's_cselect_b32 s{S_NRB}, s30, s{S_NRB}',
          f's_cmp_lt_u32 s{S_LG}, {NG}',
          f's_cselect_b32 s{S_A+2}, s{S_NRA}, 0',
          f's_cselect_b32 s{S_B+2}, s{S_NRB}, 0']
    return o


def trreads(slot, s, st):
    o = []
    for nt in range(2):
        b = BF + st * 8 + nt * 4
        for t in range(2):
            o.append(f'ds_read_b64_tr_b16 v[{b+2*t}:{b+2*t+1}], v{V_RD+nt} offset:{slot*SLOT + s*2048 + t*1024}')
    return o


def group(a, slot):
    a.i('s_waitcnt vmcnt(32)')
    for x in trreads(slot, 0, 0):
        a.i(x)
    for s in range(4):
        st = s & 1
        if s < 3:
            for x in trreads(slot, s + 1, st ^ 1):
                a.i(x)
            a.i('s_waitcnt lgkmcnt(4)')
        else:
            a.i('s_waitcnt lgkmcnt(0)')
        for rt in range(2):
            for nt in range(2):
                acc = ACC + 16 * (rt * 2 + nt)
                b = BF + st * 8 + nt * 4
                r = AF + slot * 32 + s * 8 + rt * 4
                a.i(f'v_mfma_f32_32x32x16_bf16 v[{acc}:{acc+15}], v[{b}:{b+3}], a[{r}:{r+3}], v[{acc}:{acc+15}]')
    for x in loads(slot):
        a.i(x)
    a.i(f's_add_u32 s{S_G}, s{S_G}, 1')
    a.i(f's_cmp_ge_u32 s{S_G}, {NG}')
    a.i('s_cbranch_scc1 L_k3_red')


def gen_k3(a):
    stamp = G.stamp
    a.raw('.p2align 8')
    a.raw('.globl k3_kernel')
    a.raw('.type k3_kernel,@function')
    a.label('k3_kernel')
    a.i('s_cmp_ge_u32 s2, 224')
    a.i('s_cbranch_scc1 L_k3_end')
    stamp(a, 0)
    a.i('s_load_dwordx2 s[20:21], s[0:1], 0')
    a.i('s_load_dwordx2 s[22:23], s[0:1], 40')
    a.i('s_load_dwordx4 s[24:27], s[0:1], 64')
    a.i('s_load_dwordx4 s[32:35], s[0:1], 80')
    a.i('v_and_b32 v1, 63, v0')
    a.i('v_lshrrev_b32 v2, 6, v0')
    a.i('s_nop 0')
    a.i(f'v_readfirstlane_b32 s{S_W}, v2')
    a.i(f'v_lshlrev_b32 v{V_L16}, 4, v1')
    a.i(f'v_add_u32 v{V_A1}, {G.CTX_RT}, v{V_L16}')
    a.i('s_and_b32 s3, s2, 7')
    a.i('s_lshr_b32 s4, s2, 3')
    a.i('s_mul_i32 s5, s4, 37')
    a.i('s_lshr_b32 s5, s5, 8')
    a.i('s_mul_i32 s6, s5, 7')
    a.i('s_sub_u32 s4, s4, s6')
    a.i('s_lshl_b32 s3, s3, 2')
    a.i('s_add_u32 s3, s3, s5')
    t0, t1, t2 = V_T, V_T + 1, V_T + 2
    a.i(f'v_lshrrev_b32 v{t0}, 3, v1')
    a.i(f'v_mul_u32_u24 v{t0}, 896, v{t0}')
    a.i(f'v_bfe_u32 v{t1}, v1, 4, 1')
    a.i(f'v_lshlrev_b32 v{t1}, 2, v{t1}')
    a.i(f'v_and_b32 v{t2}, 7, v1')
    a.i(f'v_xor_b32 v{t1}, v{t1}, v{t2}')
    a.i(f'v_lshlrev_b32 v{t1}, 4, v{t1}')
    a.i(f'v_add_u32 v{t0}, v{t0}, v{t1}')
    for j in range(8):
        a.i(f'v_add_u32 v{V_BD+j}, {j*8*896 - (j&3)*1024}, v{t0}')
    a.i(f's_mul_i32 s{S_WR}, s{S_W}, {3*SLOT}')
    a.i(f'v_lshrrev_b32 v{t0}, 5, v1')
    a.i(f'v_lshlrev_b32 v{t0}, 9, v{t0}')
    a.i(f'v_bfe_u32 v{t1}, v1, 2, 2')
    a.i(f'v_lshlrev_b32 v{t2}, 7, v{t1}')
    a.i(f'v_add_u32 v{t0}, v{t0}, v{t2}')
    a.i(f'v_bfe_u32 v{t2}, v1, 4, 1')
    a.i(f'v_lshlrev_b32 v{t2}, 5, v{t2}')
    a.i(f'v_add_u32 v{t0}, v{t0}, v{t2}')
    a.i(f'v_and_b32 v{t2}, 3, v1')
    a.i(f'v_lshlrev_b32 v{t2}, 3, v{t2}')
    a.i(f'v_add_u32 v{t0}, v{t0}, v{t2}')
    a.i(f'v_add_u32 v{t0}, s{S_WR}, v{t0}')
    a.i(f'v_bfe_u32 v{t1}, v1, 3, 1')
    a.i(f'v_lshlrev_b32 v{t1}, 6, v{t1}')
    a.i(f'v_add_u32 v{V_RD}, v{t0}, v{t1}')
    a.i(f'v_xor_b32 v{t1}, 64, v{t1}')
    a.i(f'v_add_u32 v{V_RD+1}, v{t0}, v{t1}')
    for r in range(64):
        a.i(f'v_mov_b32 v{ACC+r}, 0')
    a.i('s_waitcnt lgkmcnt(0)')
    a.i(f's_mul_i32 s{S_T0}, s3, {2*G.CTX_RT}')
    a.i(f's_add_u32 s{S_T0}, s{S_T0}, {G.WS_CTX}')
    a.i(f's_add_u32 s{S_A}, s34, s{S_T0}')
    a.i(f's_addc_u32 s{S_A+1}, s35, 0')
    a.i(f's_mov_b32 s{S_NRA}, {2*G.CTX_RT}')
    a.i(f's_mov_b32 s{S_A+2}, s{S_NRA}')
    a.i(f's_mov_b32 s{S_A+3}, 0x00020000')
    a.i(f's_lshl_b32 s{S_AOFF}, s{S_W}, 16')
    a.i(f's_mul_i32 s{S_AOFF2}, s{S_W}, {28*1024}')
    a.i(f's_add_u32 s{S_AOFF2}, s{S_AOFF2}, {256*1024}')
    a.i(f's_lshl_b32 s{S_T1}, s4, 7')
    a.i(f's_mul_i32 s{S_T0}, s{S_W}, {1024*896}')
    a.i(f's_add_u32 s{S_T0}, s{S_T0}, s{S_T1}')
    a.i(f's_add_u32 s{S_B}, s22, s{S_T0}')
    a.i(f's_addc_u32 s{S_B+1}, s23, 0')
    a.i(f's_sub_u32 s{S_NRB}, {4096*896}, s{S_T0}')
    a.i(f's_mov_b32 s{S_B+2}, s{S_NRB}')
    a.i(f's_mov_b32 s{S_B+3}, 0x00020000')
    a.i(f's_mul_i32 s{S_T0}, s{S_W}, {448*896}')
    a.i(f's_add_u32 s{S_T0}, s{S_T0}, s{S_T1}')
    a.i(f's_add_u32 s28, s24, s{S_T0}')
    a.i('s_addc_u32 s29, s25, 0')
    a.i(f's_sub_u32 s30, {1792*896}, s{S_T0}')
    a.i(f's_mov_b32 s{S_BOFF}, 0')
    a.i(f's_mov_b32 s{S_LG}, 0')
    a.i(f's_mov_b32 s{S_G}, 0')
    for sl in range(3):
        for x in loads(sl):
            a.i(x)
    stamp(a, 1)
    a.label('L_k3_loop')
    for sl in range(3):
        group(a, sl)
    a.i('s_branch L_k3_loop')
    a.label('L_k3_red')
    stamp(a, 2)
    a.i(f'v_lshrrev_b32 v{t0}, 2, v0')
    a.i(f'v_mul_u32_u24 v{t1}, 896, v{t0}')
    a.i(f'v_and_b32 v{t2}, 3, v0')
    a.i(f'v_lshlrev_b32 v20, 5, v{t2}')
    a.i(f'v_add_u32 v20, v20, v{t1}')
    a.i(f's_mul_i32 s{S_T0}, s3, {64*896}')
    a.i(f's_lshl_b32 s{S_T1}, s4, 7')
    a.i(f's_add_u32 s{S_T0}, s{S_T0}, s{S_T1}')
    G.srd(a, S_O, 20, 21, 2048 * 896)
    a.i(f'buffer_load_dwordx4 v[24:27], v20, s[{S_O}:{S_O+3}], s{S_T0} offen')
    a.i(f'buffer_load_dwordx4 v[28:31], v20, s[{S_O}:{S_O+3}], s{S_T0} offen offset:16')
    a.i('s_waitcnt vmcnt(2) lgkmcnt(0)')
    a.i('s_barrier')
    RS = 272
    WS = 64 * RS
    a.i(f'v_and_b32 v21, 31, v1')
    a.i(f'v_mul_u32_u24 v21, {RS}, v21')
    a.i(f'v_lshrrev_b32 v22, 5, v1')
    a.i(f'v_lshlrev_b32 v22, 4, v22')
    a.i(f'v_add_u32 v21, v21, v22')
    a.i(f's_mul_i32 s{S_T1}, s{S_W}, {WS}')
    a.i(f'v_add_u32 v21, s{S_T1}, v21')
    for rt in range(2):
        for nt in range(2):
            acc = ACC + 16 * (rt * 2 + nt)
            for g in range(4):
                a.i(f'ds_write_b128 v21, v[{acc+4*g}:{acc+4*g+3}] offset:{rt*32*RS + nt*128 + g*32}')
    a.i(f'v_mul_u32_u24 v22, {RS}, v{t0}')
    a.i(f'v_lshlrev_b32 v23, 6, v{t2}')
    a.i(f'v_add_u32 v22, v22, v23')
    a.i('s_waitcnt lgkmcnt(0)')
    a.i('s_barrier')
    for w in range(4):
        for g in range(4):
            r = ACC + 16 * w + 4 * g
            a.i(f'ds_read_b128 v[{r}:{r+3}], v22 offset:{w*WS + g*16}')
    a.i('s_waitcnt vmcnt(0)')
    for i in range(8):
        a.i(f'v_lshlrev_b32 v{96+2*i}, 16, v{24+i}')
        a.i(f'v_and_b32 v{97+2*i}, 0xffff0000, v{24+i}')
    a.i('s_waitcnt lgkmcnt(0)')
    for r in range(16):
        a.i(f'v_add_f32 v{ACC+r}, v{ACC+r}, v{ACC+16+r}')
        a.i(f'v_add_f32 v{ACC+32+r}, v{ACC+32+r}, v{ACC+48+r}')
        a.i(f'v_add_f32 v{ACC+r}, v{ACC+r}, v{96+r}')
        a.i(f'v_add_f32 v{ACC+r}, v{ACC+r}, v{ACC+32+r}')
    for i in range(8):
        a.i(f'v_cvt_pk_bf16_f32 v{24+i}, v{ACC+2*i}, v{ACC+2*i+1}')
    G.srd(a, S_O, 26, 27, 2048 * 896)
    a.i(f'buffer_store_dwordx4 v[24:27], v20, s[{S_O}:{S_O+3}], s{S_T0} offen')
    a.i(f'buffer_store_dwordx4 v[28:31], v20, s[{S_O}:{S_O+3}], s{S_T0} offen offset:16')
    stamp(a, 3)
    for k in range(4, 8):
        stamp(a, k)
    G.stamp_flush(a, 8, 34, 35, 2, S_W)
    a.label('L_k3_end')
    a.i('s_endpgm')
```

```python
import sys
from asmlib import Asm

NAME = 'parallel_sum__compressed_kv_cla__dense_activation_silu__prompt'
STAMPS = '--stamps' in sys.argv

WS_XN = 0x0000000
WS_KV = 0x0200000
WS_Q = 0x2200000
WS_CTX = 0x3200000
CTX_RT = 368 * 1024
WS_PART = 0x5000000
WS_STAMP = 0xF000000

LOG2E = 0x3fb8aa3b
NLOG2E = 0xbfb8aa3b


def srd(a, base, ptr_lo, ptr_hi, nrec=None):
    a.i(f's_mov_b32 s{base}, s{ptr_lo}')
    a.i(f's_mov_b32 s{base+1}, s{ptr_hi}')
    if nrec is not None:
        a.i(f's_mov_b32 s{base+2}, {nrec}')
    a.i(f's_mov_b32 s{base+3}, 0x00020000')


def stamp(a, idx):
    if STAMPS:
        a.i(f's_memtime s[{70+2*idx}:{71+2*idx}]')
        if idx == 0:
            a.i('s_memrealtime s[96:97]')
        a.i('s_waitcnt lgkmcnt(0)')


def stamp_flush(a, n, ws_lo, ws_hi, kidx, wave_sgpr):
    if not STAMPS:
        return
    a.i(f's_cmp_lg_u32 s{wave_sgpr}, 0')
    a.i(f's_cbranch_scc1 L_nostamp{kidx}')
    a.i(f's_add_u32 s60, s{ws_lo}, {WS_STAMP + kidx * 0x10000}')
    a.i(f's_addc_u32 s61, s{ws_hi}, 0')
    a.i('s_mov_b32 s62, 0x10000')
    a.i('s_mov_b32 s63, 0x00020000')
    a.i('s_lshl_b32 s64, s2, 8')
    a.i('v_mov_b32 v1, 0')
    a.i('s_getreg_b32 s65, hwreg(HW_REG_XCC_ID)')
    a.i('s_mov_b64 exec, 1')
    for k in range(n):
        a.i(f'v_mov_b32 v2, s{70+2*k}')
        a.i(f'buffer_store_dword v2, v1, s[60:63], s64 offen offset:{4*k}')
        a.i('s_nop 1')
    a.i('v_mov_b32 v2, s65')
    a.i(f'buffer_store_dword v2, v1, s[60:63], s64 offen offset:{60}')
    a.i('s_memrealtime s[98:99]')
    a.i('s_waitcnt lgkmcnt(0)')
    a.i('s_sub_u32 s98, s98, s96')
    a.i('v_mov_b32 v3, s98')
    a.i(f'buffer_store_dword v3, v1, s[60:63], s64 offen offset:{56}')
    a.i('v_mov_b32 v4, s96')
    a.i(f'buffer_store_dword v4, v1, s[60:63], s64 offen offset:{52}')
    a.label(f'L_nostamp{kidx}')


LDS_B = 0
LDS_A = 65536

V_OFFA = 2
V_OFFB = 10
V_RDA = 14
V_RDB = 18
V_ST = 22
V_T = 24
ACC0 = 32

S_SRDA = 8
S_SRDB = 12
S_SRDO = 16
S_W = 36
S_WM = 37
S_WN = 38
S_AOFF = 39
S_BOFF = 40
S_AWR = 41
S_BWR = 42
S_IT = 43
S_NRA = 44
S_NRB = 45
S_ADELTA = 46
S_AIDX = 47
S_BSTEP = 48
S_MT1 = 49
S_MT2 = 50
S_MT3 = 51
S_EVT = 52
S_AWREND = 53
S_T0 = 54
S_T1 = 55
S_T2 = 56
S_T3 = 57
S_ISFFN = 58


def acc_reg(t):
    if t < 14:
        return f'v[{ACC0+16*t}:{ACC0+16*t+15}]'
    return f'a[{64+16*(t-14)}:{64+16*(t-14)+15}]'


def fragA(st, mt):
    b = st * 32 + mt * 4
    return b


def fragB(st, nt):
    b = st * 32 + 16 + nt * 4
    return b


def k1_reads(MT, step, st):
    r = []
    A = []
    for mt in range(MT):
        b = fragA(st, mt)
        A.append(f'ds_read_b128 a[{b}:{b+3}], v{V_RDA+step} offset:{mt*4096}')
    B = []
    hs, sp = step >> 1, step & 1
    for nt in range(4):
        b = fragB(st, nt)
        for t in range(2):
            B.append(f'ds_read_b64_tr_b16 a[{b+2*t}:{b+2*t+1}], v{V_RDB+nt} offset:{hs*16384+sp*8192+t*2048}')
    for k in range(4):
        if k < MT:
            r.append(A[k])
        r.append(B[2 * k])
        r.append(B[2 * k + 1])
    return r


def k1_dmaA(MT, half):
    n = MT
    out = [f's_add_u32 m0, s{S_AWR}, {half*n*1024}' if half else f's_mov_b32 m0, s{S_AWR}']
    for j in range(n):
        out.append(f'buffer_load_dwordx4 v{V_OFFA+half*n+j}, s[{S_SRDA}:{S_SRDA+3}], s{S_AOFF} offen offset:{j*1024} lds')
    return out


def k1_dmaB(odd):
    out = [f's_add_u32 m0, s{S_BWR}, 16384' if odd else f's_mov_b32 m0, s{S_BWR}']
    for j in range(4):
        out.append(f'buffer_load_dwordx4 v{V_OFFB+j}, s[{S_SRDB}:{S_SRDB+3}], s{S_BOFF} offen offset:{j*1024} lds')
    return out


def k1_adv_A_write(MT):
    return [f's_add_u32 s{S_AOFF}, s{S_AOFF}, 128',
            f's_add_u32 s{S_AWR}, s{S_AWR}, 32768',
            f's_cmp_ge_u32 s{S_AWR}, s{S_AWREND}',
            f's_cselect_b32 s{S_T0}, 98304, 0',
            f's_sub_u32 s{S_AWR}, s{S_AWR}, s{S_T0}']


def k1_prologue_dma(a, MT):
    for it in range(2):
        for x in k1_dmaA(MT, 0):
            a.i(x)
            if x.startswith('s_'):
                a.i('s_nop 0')
        for x in k1_dmaB(0):
            a.i(x)
            if x.startswith('s_'):
                a.i('s_nop 0')
        a.i(f's_add_u32 s{S_BOFF}, s{S_BOFF}, s{S_BSTEP}')
        for x in k1_dmaA(MT, 1):
            a.i(x)
            if x.startswith('s_'):
                a.i('s_nop 0')
        for x in k1_dmaB(1):
            a.i(x)
            if x.startswith('s_'):
                a.i('s_nop 0')
        a.i(f's_add_u32 s{S_BOFF}, s{S_BOFF}, s{S_BSTEP}')
        a.i(f's_xor_b32 s{S_BWR}, s{S_BWR}, 0x8000')
        for x in k1_adv_A_write(MT):
            a.i(x)


def k1_loop(a, MT, swap, NS, lbl, events=False):
    per = 2 * MT + 8
    w1 = per + MT
    w3 = 4 + MT + 4 + MT
    a.label(lbl)
    for step in range(4):
        st = step & 1
        mf = []
        for mt in range(MT):
            for nt in range(4):
                t = mt * 4 + nt
                fa, fb = fragA(st, mt), fragB(st, nt)
                A = f'a[{fa}:{fa+3}]'
                B = f'a[{fb}:{fb+3}]'
                if swap:
                    mf.append(f'v_mfma_f32_32x32x16_bf16 {acc_reg(t)}, {A}, {B}, {acc_reg(t)}')
                else:
                    mf.append(f'v_mfma_f32_32x32x16_bf16 {acc_reg(t)}, {B}, {A}, {acc_reg(t)}')
        n = len(mf)
        slots = [[] for _ in range(n)]
        reads = k1_reads(MT, (step + 1) & 3, st ^ 1)
        if step == 0:
            dma = k1_dmaA(MT, 0)
        elif step == 1:
            dma = k1_dmaB(0)
        elif step == 2:
            dma = k1_dmaA(MT, 1)
        else:
            dma = k1_dmaB(1)
        g0 = 0
        if step in (1, 3):
            slots[0].append(f's_waitcnt vmcnt({w1 if step == 1 else w3})')
            slots[0].append('s_barrier')
        for k, r in enumerate(reads):
            slots[min(n - 1, g0 + k)].append(r)
        slots[0].append(dma[0])
        nd = len(dma) - 1
        for j in range(nd):
            slots[1 + (j * (n - 2)) // nd].append(dma[1 + j])
        last = n - 1
        if step == 0:
            if events:
                slots[last] += [f's_cmp_eq_u32 s{S_IT}, s{S_EVT}', f's_cbranch_scc1 {lbl}_evt', ('L', f'{lbl}_evt_ret')]
        if step == 1:
            slots[last].append(f's_add_u32 s{S_BOFF}, s{S_BOFF}, s{S_BSTEP}')
            slots[last - 2] += [f's_add_u32 s{S_AIDX}, s{S_AIDX}, 1', f's_cmp_eq_u32 s{S_AIDX}, 3']
            slots[last - 1] += [f's_cselect_b32 s{S_ADELTA}, 0xffff0000, s{S_T3}', f's_cselect_b32 s{S_AIDX}, 0, s{S_AIDX}']
        if step == 2:
            adv = k1_adv_A_write(MT)
            upd = [f'v_add_u32 v{V_RDA+s}, s{S_ADELTA}, v{V_RDA+s}' for s in range(4)]
            upd += [f'v_xor_b32 v{V_RDB+s}, 0x8000, v{V_RDB+s}' for s in range(4)]
            for k in range(3):
                slots[2 + 3 * k].append(upd[k])
            slots[last] += upd[3:]
            slots[last] += adv
        if step == 3:
            slots[last - 1] += [f's_add_u32 s{S_BOFF}, s{S_BOFF}, s{S_BSTEP}', f's_xor_b32 s{S_BWR}, s{S_BWR}, 0x8000']
            slots[last] += [f's_add_u32 s{S_IT}, s{S_IT}, 1',
                            f's_cmp_lt_u32 s{S_IT}, {NS-2}',
                            f's_cselect_b32 s{S_SRDA+2}, s{S_NRA}, 0',
                            f's_cselect_b32 s{S_SRDB+2}, s{S_NRB}, 0',
                            f's_cmp_lt_u32 s{S_IT}, {NS}',
                            f's_cbranch_scc1 {lbl}']
        a.i('s_waitcnt lgkmcnt(0)')
        for m, s in zip(mf, slots):
            a.i(m)
            for f in s:
                if isinstance(f, tuple):
                    a.label(f[1])
                else:
                    a.i(f)


def k1_setup_addr(a, MT, strideA_shift_or_sgpr, strideB_sgpr):
    sA = strideA_shift_or_sgpr
    t0, t1, t2, t3 = V_T, V_T + 1, V_T + 2, V_T + 3
    a.i(f'v_lshrrev_b32 v{t0}, 3, v1')
    a.i(f's_mul_i32 s{S_T0}, s{S_W}, {16*MT}')
    a.i(f'v_add_u32 v{t0}, s{S_T0}, v{t0}')
    a.i(f'v_mul_lo_u32 v{t0}, v{t0}, s{sA}')
    a.i(f'v_lshrrev_b32 v{t1}, 4, v1')
    a.i(f'v_and_b32 v{t2}, 7, v1')
    a.i(f'v_xor_b32 v{t1}, v{t1}, v{t2}')
    a.i(f'v_lshlrev_b32 v{t1}, 4, v{t1}')
    a.i(f'v_xor_b32 v{t2}, 64, v{t1}')
    a.i(f'v_add_u32 v{t1}, v{t0}, v{t1}')
    a.i(f'v_add_u32 v{t2}, v{t0}, v{t2}')
    a.i(f's_lshl_b32 s{S_T1}, s{sA}, 3')
    for j in range(2 * MT):
        src = t2 if (j & 1) else t1
        if j == 0:
            a.i(f'v_mov_b32 v{V_OFFA}, v{src}')
        else:
            a.i(f's_mul_i32 s{S_T2}, s{S_T1}, {j}')
            a.i(f's_sub_u32 s{S_T2}, s{S_T2}, {(j % MT)*1024}')
            a.i(f'v_add_u32 v{V_OFFA+j}, s{S_T2}, v{src}')
    sB = strideB_sgpr
    a.i(f'v_lshrrev_b32 v{t0}, 5, v1')
    a.i(f'v_lshlrev_b32 v{t1}, 2, v{t0}')
    a.i(f'v_and_b32 v{t2}, 31, v1')
    a.i(f'v_xor_b32 v{t1}, v{t1}, v{t2}')
    a.i(f'v_lshlrev_b32 v{t1}, 4, v{t1}')
    a.i(f'v_xor_b32 v{t2}, 128, v{t1}')
    a.i(f's_lshl_b32 s{S_T0}, s{S_W}, 3')
    a.i(f'v_add_u32 v{t0}, s{S_T0}, v{t0}')
    a.i(f'v_mul_lo_u32 v{t0}, v{t0}, s{sB}')
    a.i(f'v_add_u32 v{t1}, v{t0}, v{t1}')
    a.i(f'v_add_u32 v{t2}, v{t0}, v{t2}')
    for j in range(4):
        src = t2 if (j & 1) else t1
        if j == 0:
            a.i(f'v_mov_b32 v{V_OFFB}, v{src}')
        else:
            a.i(f's_mul_i32 s{S_T2}, s{sB}, {2*j}')
            a.i(f's_sub_u32 s{S_T2}, s{S_T2}, {j*1024}')
            a.i(f'v_add_u32 v{V_OFFB+j}, s{S_T2}, v{src}')
    a.i(f'v_and_b32 v{t0}, 31, v1')
    a.i(f's_mul_i32 s{S_T0}, s{S_WM}, {32*MT*128}')
    a.i(f's_add_u32 s{S_T0}, s{S_T0}, {LDS_A}')
    a.i(f'v_lshlrev_b32 v{t0}, 7, v{t0}')
    a.i(f'v_add_u32 v{t0}, s{S_T0}, v{t0}')
    a.i(f'v_bfe_u32 v{t1}, v1, 1, 3')
    a.i(f'v_lshrrev_b32 v{t2}, 5, v1')
    a.i(f'v_xor_b32 v{t1}, v{t1}, v{t2}')
    a.i(f'v_lshlrev_b32 v{t1}, 4, v{t1}')
    for s in range(4):
        a.i(f'v_xor_b32 v{t2}, {32*s}, v{t1}')
        a.i(f'v_add_u32 v{V_RDA+s}, v{t0}, v{t2}')
    a.i(f'v_lshrrev_b32 v{t0}, 5, v1')
    a.i(f'v_lshlrev_b32 v{t0}, 12, v{t0}')
    a.i(f'v_bfe_u32 v{t1}, v1, 2, 2')
    a.i(f'v_lshlrev_b32 v{t2}, 9, v{t1}')
    a.i(f'v_add_u32 v{t0}, v{t0}, v{t2}')
    a.i(f'v_bfe_u32 v{t2}, v1, 4, 1')
    a.i(f'v_lshlrev_b32 v{t2}, 5, v{t2}')
    a.i(f'v_add_u32 v{t0}, v{t0}, v{t2}')
    a.i(f'v_and_b32 v{t2}, 3, v1')
    a.i(f'v_lshlrev_b32 v{t2}, 3, v{t2}')
    a.i(f'v_add_u32 v{t0}, v{t0}, v{t2}')
    a.i(f's_lshl_b32 s{S_T0}, s{S_WN}, 8')
    a.i(f's_add_u32 s{S_T0}, s{S_T0}, {LDS_B}')
    a.i(f'v_add_u32 v{t0}, s{S_T0}, v{t0}')
    a.i(f'v_lshlrev_b32 v{t1}, 6, v{t1}')
    for nt in range(4):
        a.i(f'v_xor_b32 v{t2}, {64*nt}, v{t1}')
        a.i(f'v_add_u32 v{V_RDB+nt}, v{t0}, v{t2}')
    a.i(f's_mul_i32 s{S_AWR}, s{S_W}, {2*MT*1024}')
    a.i(f's_add_u32 s{S_AWR}, s{S_AWR}, {LDS_A}')
    a.i(f's_add_u32 s{S_AWREND}, s{S_AWR}, 98304')
    a.i(f's_lshl_b32 s{S_BWR}, s{S_W}, 12')
    a.i(f's_add_u32 s{S_BWR}, s{S_BWR}, {LDS_B}')
    a.i(f's_mov_b32 s{S_AOFF}, 0')
    a.i(f's_mov_b32 s{S_BOFF}, 0')
    a.i(f's_mov_b32 s{S_IT}, 0')
    a.i(f's_mov_b32 s{S_AIDX}, 0')
    a.i(f's_mov_b32 s{S_T3}, 32768')
    a.i(f's_lshl_b32 s{S_BSTEP}, s{sB}, 5')


def k1_zero_acc(a, MT):
    for t in range(MT * 4):
        if t < 14:
            for r in range(16):
                a.i(f'v_mov_b32 v{ACC0+16*t+r}, 0')
        else:
            for r in range(16):
                a.i(f'v_accvgpr_write_b32 a{64+16*(t-14)+r}, 0')


def k1_epilogue(a, MT, silu=False):
    so = ['0', f's{S_MT1}', f's{S_MT2}', f's{S_MT3}']
    for t in range(MT * 4):
        mt, nt = t >> 2, t & 3
        if t < 14:
            b = ACC0 + 16 * t
        else:
            b = ACC0 + 16 * (t - 14)
            for r in range(16):
                a.i(f'v_accvgpr_read_b32 v{b+r}, a{64+16*(t-14)+r}')
        if silu:
            for g in range(0, 16, 4):
                for r in range(g, g + 4):
                    a.i(f'v_mul_f32 v{V_T+(r&3)}, {NLOG2E:#x}, v{b+r}')
                for r in range(g, g + 4):
                    a.i(f'v_exp_f32 v{V_T+(r&3)}, v{V_T+(r&3)}')
                for r in range(g, g + 4):
                    a.i(f'v_add_f32 v{V_T+4+(r&3)}, 1.0, v{V_T+(r&3)}')
                for r in range(g, g + 4):
                    a.i(f'v_rcp_f32 v{V_T+4+(r&3)}, v{V_T+4+(r&3)}')
                for r in range(g, g + 4):
                    a.i(f'v_mul_f32 v{b+r}, v{b+r}, v{V_T+4+(r&3)}')
        for half in range(2):
            h = b + 8 * half
            for i in range(4):
                a.i(f'v_cvt_pk_bf16_f32 v{h+i}, v{h+2*i}, v{h+2*i+1}')
            off = (2 * nt + half) * 1024
            vo = V_ST + (off >> 12)
            a.i(f'buffer_store_dwordx4 v[{h}:{h+3}], v{vo}, s[{S_SRDO}:{S_SRDO+3}], {so[mt]} offen offset:{off & 4095}')


def dpp_reduce32(a, v, t):
    a.i('s_nop 1')
    a.i(f'v_add_f32_dpp v{v}, v{v}, v{v} quad_perm:[1,0,3,2] row_mask:0xf bank_mask:0xf')
    a.i('s_nop 1')
    a.i(f'v_add_f32_dpp v{v}, v{v}, v{v} quad_perm:[2,3,0,1] row_mask:0xf bank_mask:0xf')
    a.i('s_nop 1')
    a.i(f'v_add_f32_dpp v{v}, v{v}, v{v} row_half_mirror row_mask:0xf bank_mask:0xf')
    a.i('s_nop 1')
    a.i(f'v_add_f32_dpp v{v}, v{v}, v{v} row_mirror row_mask:0xf bank_mask:0xf')
    a.i(f'v_mov_b32 v{t}, v{v}')
    a.i('s_nop 1')
    a.i(f'v_permlane16_swap_b32 v{v}, v{t}')
    a.i('s_nop 1')
    a.i(f'v_add_f32 v{v}, v{v}, v{t}')


def bf16_round(a, v):
    a.i(f'v_cvt_pk_bf16_f32 v{v}, v{v}, v{v}')
    a.i(f'v_and_b32 v{v}, 0xffff0000, v{v}')


def gen_k1(a):
    a.raw('.p2align 8')
    a.raw('.globl k1_kernel')
    a.raw('.type k1_kernel,@function')
    a.label('k1_kernel')
    a.i('s_cmp_ge_u32 s2, 256')
    a.i('s_cbranch_scc1 L_k1_end')
    stamp(a, 0)
    a.i('s_load_dwordx4 s[20:23], s[0:1], 0')
    a.i('s_load_dwordx4 s[24:27], s[0:1], 16')
    a.i('s_load_dwordx2 s[28:29], s[0:1], 32')
    a.i('s_load_dwordx2 s[30:31], s[0:1], 56')
    a.i('s_load_dwordx4 s[32:35], s[0:1], 80')
    a.i('v_and_b32 v1, 63, v0')
    a.i('v_lshrrev_b32 v2, 6, v0')
    a.i('s_nop 0')
    a.i(f'v_readfirstlane_b32 s{S_W}, v2')
    a.i('s_nop 3')
    a.i(f's_lshr_b32 s{S_WM}, s{S_W}, 1')
    a.i(f's_and_b32 s{S_WN}, s{S_W}, 1')
    a.i('s_and_b32 s3, s2, 7')
    a.i('s_lshr_b32 s4, s2, 3')
    a.i('s_and_b32 s5, s4, 7')
    a.i('s_lshr_b32 s4, s4, 3')
    a.i('s_and_b32 s6, s4, 1')
    a.i('s_lshl_b32 s3, s3, 1')
    a.i('s_add_u32 s3, s3, s6')
    a.i('s_lshr_b32 s4, s4, 1')
    X = ACC0
    a.i('v_lshrrev_b32 v3, 5, v1')
    a.i('s_lshl_b32 s6, s2, 3')
    a.i(f's_lshl_b32 s7, s{S_W}, 1')
    a.i('s_add_u32 s6, s6, s7')
    a.i('v_add_u32 v3, s6, v3')
    a.i('v_mul_u32_u24 v3, 896, v3')
    a.i('v_and_b32 v4, 31, v1')
    a.i('v_lshlrev_b32 v5, 4, v4')
    a.i('v_add_u32 v60, v3, v5')
    a.i('v_add_u32 v61, 512, v60')
    a.i('v_cmp_gt_u32 vcc, 24, v4')
    a.i('v_mov_b32 v6, 0x7ffffff0')
    a.i('s_nop 0')
    a.i('v_cndmask_b32 v61, v6, v61, vcc')
    a.i('s_waitcnt lgkmcnt(0)')
    srd(a, S_SRDO, 20, 21, 2048 * 896)
    a.i(f'buffer_load_dwordx4 v[{X}:{X+3}], v60, s[{S_SRDO}:{S_SRDO+3}], 0 offen')
    a.i(f'buffer_load_dwordx4 v[{X+4}:{X+7}], v61, s[{S_SRDO}:{S_SRDO+3}], 0 offen')
    a.i('s_lshl_b32 s6, s5, 19')
    a.i(f's_add_u32 s{S_SRDA}, s22, s6')
    a.i(f's_addc_u32 s{S_SRDA+1}, s23, 0')
    a.i(f's_mov_b32 s{S_NRA}, {256*2048}')
    a.i(f's_mov_b32 s{S_SRDA+2}, s{S_NRA}')
    a.i(f's_mov_b32 s{S_SRDA+3}, 0x00020000')
    a.i('s_cmp_eq_u32 s4, 0')
    a.i('s_cselect_b32 s6, s26, s28')
    a.i('s_cselect_b32 s7, s27, s29')
    a.i(f's_lshl_b32 s{S_T0}, s3, 9')
    a.i(f's_add_u32 s{S_SRDB}, s6, s{S_T0}')
    a.i(f's_addc_u32 s{S_SRDB+1}, s7, 0')
    a.i(f's_sub_u32 s{S_NRB}, {1024*8192}, s{S_T0}')
    a.i(f's_mov_b32 s{S_SRDB+2}, s{S_NRB}')
    a.i(f's_mov_b32 s{S_SRDB+3}, 0x00020000')
    a.i('s_mov_b32 s66, 2048')
    a.i('s_mov_b32 s67, 8192')
    k1_setup_addr(a, 4, 66, 67)
    stamp(a, 8)
    k1_prologue_dma(a, 4)
    stamp(a, 9)
    F = 64
    a.i('s_waitcnt vmcnt(32)')
    stamp(a, 10)
    for i in range(8):
        a.i(f'v_lshlrev_b32 v{F+2*i}, 16, v{X+i}')
        a.i(f'v_and_b32 v{F+2*i+1}, 0xffff0000, v{X+i}')
    a.i(f'v_add_f32 v80, v{F}, v{F+1}')
    for i in range(2, 16):
        a.i(f'v_add_f32 v80, v80, v{F+i}')
    dpp_reduce32(a, 80, 81)
    a.i(f'v_mul_f32 v80, {0x3b124925:#x}, v80')
    a.i(f'v_sub_f32 v82, v{F}, v80')
    a.i('v_mul_f32 v83, v82, v82')
    for i in range(1, 8):
        a.i(f'v_sub_f32 v82, v{F+i}, v80')
        a.i('v_fmac_f32 v83, v82, v82')
    a.i(f'v_sub_f32 v82, v{F+8}, v80')
    a.i('v_mul_f32 v84, v82, v82')
    for i in range(9, 16):
        a.i(f'v_sub_f32 v82, v{F+i}, v80')
        a.i('v_fmac_f32 v84, v82, v82')
    a.i('v_cndmask_b32 v84, 0, v84, vcc')
    a.i('v_add_f32 v83, v83, v84')
    dpp_reduce32(a, 83, 81)
    a.i(f'v_mul_f32 v83, {0x3b124925:#x}, v83')
    bf16_round(a, 83)
    a.i(f'v_add_f32 v83, {0x3727c5ac:#x}, v83')
    bf16_round(a, 83)
    a.i('v_sqrt_f32 v83, v83')
    a.i('s_nop 0')
    bf16_round(a, 83)
    a.i('v_rcp_f32 v83, v83')
    bf16_round(a, 80)
    for i in range(8):
        a.i(f'v_sub_f32 v{F+2*i}, v{F+2*i}, v80')
        a.i(f'v_sub_f32 v{F+2*i+1}, v{F+2*i+1}, v80')
        a.i(f'v_cvt_pk_bf16_f32 v{X+i}, v{F+2*i}, v{F+2*i+1}')
        a.i(f'v_lshlrev_b32 v{F+2*i}, 16, v{X+i}')
        a.i(f'v_and_b32 v{F+2*i+1}, 0xffff0000, v{X+i}')
        a.i(f'v_mul_f32 v{F+2*i}, v{F+2*i}, v83')
        a.i(f'v_mul_f32 v{F+2*i+1}, v{F+2*i+1}, v83')
        a.i(f'v_cvt_pk_bf16_f32 v{X+i}, v{F+2*i}, v{F+2*i+1}')
    a.i(f's_add_u32 s{S_SRDO}, s34, {WS_XN}')
    a.i(f's_addc_u32 s{S_SRDO+1}, s35, 0')
    a.i(f'buffer_store_dwordx4 v[{X}:{X+3}], v60, s[{S_SRDO}:{S_SRDO+3}], 0 offen sc0 sc1')
    a.i(f'buffer_store_dwordx4 v[{X+4}:{X+7}], v61, s[{S_SRDO}:{S_SRDO+3}], 0 offen sc0 sc1')
    a.i('s_nop 1')
    k1_zero_acc(a, 4)
    srd(a, 60, 32, 33, 256)
    a.i(f's_cmp_eq_u32 s{S_W}, 0')
    a.i(f's_cselect_b32 s{S_EVT}, 2, -1')
    a.i('s_lshl_b32 s6, s3, 21')
    a.i('s_lshl_b32 s7, s5, 18')
    a.i('s_add_u32 s6, s6, s7')
    a.i(f's_lshl_b32 s7, s{S_WM}, 17')
    a.i('s_add_u32 s6, s6, s7')
    a.i('s_lshl_b32 s7, s4, 14')
    a.i('s_add_u32 s6, s6, s7')
    a.i(f's_lshl_b32 s7, s{S_WN}, 13')
    a.i('s_add_u32 s6, s6, s7')
    a.i(f's_add_u32 s6, s6, {WS_KV}')
    a.i('s_add_u32 s64, s34, s6')
    a.i('s_addc_u32 s65, s35, 0')
    a.i(f'v_lshlrev_b32 v{V_ST}, 4, v1')
    a.i(f'v_add_u32 v{V_ST+1}, 4096, v{V_ST}')
    stamp(a, 1)
    a.i('s_waitcnt vmcnt(22)')
    a.i('s_barrier')
    stamp(a, 2)
    for r in k1_reads(4, 0, 0):
        a.i(r)
    a.i('s_cmp_eq_u32 s4, 0')
    a.i('s_cbranch_scc0 L_k1_loopV')
    k1_loop(a, 4, False, 16, 'L_k1_loopK', events=True)
    a.i('s_branch L_k1_ep1')
    k1_loop(a, 4, True, 16, 'L_k1_loopV', events=True)
    a.label('L_k1_ep1')
    stamp(a, 3)
    a.i('s_waitcnt vmcnt(0) lgkmcnt(0)')
    a.i('s_barrier')
    a.i('s_and_b32 s3, s2, 7')
    a.i('s_lshl_b32 s3, s3, 5')
    a.i('s_lshr_b32 s4, s2, 3')
    a.i('s_add_u32 s3, s3, s4')
    a.i('s_mul_i32 s4, s3, 373')
    a.i('s_lshr_b32 s4, s4, 12')
    a.i('s_mul_i32 s5, s4, 11')
    a.i('s_sub_u32 s5, s3, s5')
    a.i('s_mov_b32 s68, s3')
    a.i(f's_mul_i32 s6, s5, {192*896}')
    a.i(f's_add_u32 s6, s6, {WS_XN}')
    a.i(f's_add_u32 s{S_SRDA}, s34, s6')
    a.i(f's_addc_u32 s{S_SRDA+1}, s35, 0')
    a.i('s_cmp_eq_u32 s5, 10')
    a.i(f's_mov_b32 s{S_NRA}, {192*896}')
    a.i(f's_cselect_b32 s{S_NRA}, {128*896}, s{S_NRA}')
    a.i('s_cmp_ge_u32 s4, 16')
    a.i(f's_cselect_b32 s{S_ISFFN}, 1, 0')
    a.i('s_cselect_b32 s6, s30, s24')
    a.i('s_cselect_b32 s7, s31, s25')
    a.i('s_mov_b32 s67, 8192')
    a.i('s_cselect_b32 s67, 3584, s67')
    a.i(f's_mov_b32 s{S_T1}, {448*8192}')
    a.i(f's_cselect_b32 s{S_T1}, {448*3584}, s{S_T1}')
    a.i(f's_and_b32 s{S_T0}, s4, 15')
    a.i(f's_lshl_b32 s{S_T0}, s{S_T0}, 9')
    a.i(f's_add_u32 s{S_SRDB}, s6, s{S_T0}')
    a.i(f's_addc_u32 s{S_SRDB+1}, s7, 0')
    a.i(f's_sub_u32 s{S_NRB}, s{S_T1}, s{S_T0}')
    a.i('s_cmp_lt_u32 s3, 253')
    a.i(f's_cselect_b32 s{S_NRA}, s{S_NRA}, 0')
    a.i(f's_cselect_b32 s{S_NRB}, s{S_NRB}, 0')
    a.i(f's_mov_b32 s{S_SRDA+2}, s{S_NRA}')
    a.i(f's_mov_b32 s{S_SRDB+2}, s{S_NRB}')
    a.i('s_mov_b32 s66, 896')
    k1_setup_addr(a, 3, 66, 67)
    stamp(a, 11)
    k1_prologue_dma(a, 3)
    stamp(a, 12)
    a.i(f's_mov_b32 s{S_SRDO}, s64')
    a.i(f's_mov_b32 s{S_SRDO+1}, s65')
    a.i(f's_mov_b32 s{S_SRDO+2}, {4*32768}')
    a.i(f's_mov_b32 s{S_MT1}, 32768')
    a.i(f's_mov_b32 s{S_MT2}, 65536')
    a.i(f's_mov_b32 s{S_MT3}, 98304')
    k1_epilogue(a, 4)
    a.i('s_nop 1')
    stamp(a, 4)
    a.i('s_cmp_ge_u32 s68, 253')
    a.i('s_cbranch_scc1 L_k1_done')
    k1_zero_acc(a, 3)
    a.i('s_mul_i32 s6, s5, 6')
    a.i(f's_mul_i32 s7, s{S_WM}, 3')
    a.i('s_add_u32 s6, s6, s7')
    a.i('s_sub_u32 s7, 64, s6')
    a.i('s_min_u32 s7, s7, 3')
    a.i(f's_cmp_eq_u32 s{S_ISFFN}, 1')
    a.i(f's_mov_b32 s{S_MT1}, 16384')
    a.i(f's_cselect_b32 s{S_MT1}, {CTX_RT}, s{S_MT1}')
    a.i(f's_mul_i32 s{S_T0}, s6, s{S_MT1}')
    a.i(f's_mul_i32 s{S_SRDO+2}, s7, s{S_MT1}')
    a.i(f's_lshl_b32 s{S_MT2}, s{S_MT1}, 1')
    a.i(f's_lshl_b32 s{S_T1}, s4, 20')
    a.i(f's_add_u32 s{S_T1}, s{S_T1}, {WS_Q}')
    a.i(f's_lshl_b32 s{S_T2}, s4, 14')
    a.i(f's_add_u32 s{S_T2}, s{S_T2}, {WS_CTX}')
    a.i(f's_cmp_eq_u32 s{S_ISFFN}, 1')
    a.i(f's_cselect_b32 s{S_T1}, s{S_T2}, s{S_T1}')
    a.i(f's_add_u32 s{S_T0}, s{S_T0}, s{S_T1}')
    a.i(f's_lshl_b32 s{S_T1}, s{S_WN}, 13')
    a.i(f's_add_u32 s{S_T0}, s{S_T0}, s{S_T1}')
    a.i(f's_add_u32 s64, s34, s{S_T0}')
    a.i('s_addc_u32 s65, s35, 0')
    a.i('s_waitcnt vmcnt(50)')
    a.i('s_barrier')
    stamp(a, 5)
    for r in k1_reads(3, 0, 0):
        a.i(r)
    k1_loop(a, 3, False, 7, 'L_k1_loop2')
    stamp(a, 6)
    a.i(f's_mov_b32 s{S_SRDO}, s64')
    a.i(f's_mov_b32 s{S_SRDO+1}, s65')
    a.i('s_nop 7')
    a.i(f's_cmp_eq_u32 s{S_ISFFN}, 1')
    a.i('s_cbranch_scc1 L_k1_ep2f')
    k1_epilogue(a, 3)
    a.i('s_branch L_k1_done')
    a.label('L_k1_ep2f')
    k1_epilogue(a, 3, silu=True)
    a.label('L_k1_done')
    stamp(a, 7)
    stamp_flush(a, 13, 34, 35, 0, S_W)
    a.label('L_k1_end')
    a.i('s_endpgm')
    for lbl in ('L_k1_loopK', 'L_k1_loopV'):
        a.label(f'{lbl}_evt')
        a.i(f's_cmp_eq_u32 s{S_EVT}, 2')
        a.i(f's_cbranch_scc0 {lbl}_evt2')
        a.i(f'v_mov_b32 v{V_T}, 1')
        a.i(f'v_mov_b32 v{V_T+1}, 0')
        a.i('s_mov_b64 exec, 1')
        a.i(f'buffer_atomic_add v{V_T}, v{V_T+1}, s[60:63], 0 offen sc1')
        a.i('s_mov_b64 exec, -1')
        a.i(f's_mov_b32 s{S_EVT}, 9')
        a.i(f's_branch {lbl}_evt_ret')
        a.label(f'{lbl}_evt2')
        a.i(f's_cmp_eq_u32 s{S_EVT}, 9')
        a.i(f's_cbranch_scc0 {lbl}_evt3')
        a.i(f'buffer_load_dword v{V_T+2}, v{V_T+1}, s[60:63], 0 offen sc1')
        a.i(f's_mov_b32 s{S_EVT}, 11')
        a.i(f's_branch {lbl}_evt_ret')
        a.label(f'{lbl}_evt3')
        a.i(f's_mov_b32 s{S_T1}, 0')
        a.label(f'{lbl}_evt3l')
        a.i(f'v_readfirstlane_b32 s{S_T0}, v{V_T+2}')
        a.i('s_nop 3')
        a.i(f's_cmp_ge_u32 s{S_T0}, 256')
        a.i(f's_cbranch_scc1 {lbl}_evt3ok')
        a.i(f's_add_u32 s{S_T1}, s{S_T1}, 1')
        a.i(f's_cmp_ge_u32 s{S_T1}, 0x40000')
        a.i(f's_cbranch_scc1 {lbl}_evt3ok')
        a.i('s_sleep 4')
        a.i(f'buffer_load_dword v{V_T+2}, v{V_T+1}, s[60:63], 0 offen sc1')
        a.i('s_waitcnt vmcnt(0)')
        a.i(f's_branch {lbl}_evt3l')
        a.label(f'{lbl}_evt3ok')
        a.i('buffer_inv sc1')
        a.i(f's_mov_b32 s{S_EVT}, -1')
        a.i(f's_branch {lbl}_evt_ret')


def desc(name, vgpr, accum, sgpr=102):
    return f'''.p2align 6
.amdhsa_kernel {name}
  .amdhsa_next_free_vgpr {vgpr}
  .amdhsa_next_free_sgpr {sgpr}
  .amdhsa_accum_offset {accum}
  .amdhsa_group_segment_fixed_size 0
  .amdhsa_kernarg_size 96
  .amdhsa_user_sgpr_count 2
  .amdhsa_user_sgpr_kernarg_segment_ptr 1
  .amdhsa_system_sgpr_workgroup_id_x 1
.end_amdhsa_kernel
'''


def main():
    import gen_k2, gen_k3
    a = Asm()
    gen_k1(a)
    gen_k2.gen_k2(a)
    gen_k3.gen_k3(a)
    probs = a.check('k')
    for p in probs:
        print('HAZARD', p, file=sys.stderr)
    head = open('cdna_kernels/' + NAME + '.s.ref').read().split('; Override launch')[0]
    out = head
    out += '; @launch kernel=k1_kernel grid=(256,1,1) block=(256,1,1) lds=163840\n'
    out += '; @launch kernel=k2_kernel grid=(256,1,1) block=(256,1,1) lds=147456\n'
    out += '; @launch kernel=k3_kernel grid=(224,1,1) block=(256,1,1) lds=98304\n'
    out += '.amdgcn_target "amdgcn-amd-amdhsa--gfx950"\n.text\n'
    out += a.text()
    out += '.section .rodata,"a"\n'
    out += desc('k1_kernel', 352, 256)
    out += desc('k2_kernel', 416, 256)
    out += desc('k3_kernel', 224, 128)
    fn = [x for x in sys.argv[1:] if not x.startswith('--')]
    open(fn[0] if fn else 'out.s', 'w').write(out)


if __name__ == '__main__':
    import gen
    gen.main()
```
